```python
import torch

def _softmax(x, axis=-1):
    return torch.softmax(x, dim=axis)

def _gelu(x):
    return torch.nn.functional.gelu(x, approximate='tanh')

def _silu(x):
    return torch.nn.functional.silu(x)

def _sigmoid(x):
    return torch.sigmoid(x)

def _layernorm(x, axis=-1, eps=1e-05):
    m = x.mean(dim=axis, keepdim=True)
    v = x.var(dim=axis, keepdim=True, unbiased=False)
    return (x - m) / torch.sqrt(v + eps)

def _scatter_add(tgt, idx, src, axis=0):
    return tgt.clone().index_add_(axis, idx, src)

def _segment_sum(src, seg, n):
    out = torch.zeros((n,) + src.shape[1:], dtype=src.dtype)
    return out.index_add_(0, seg, src)

def _pad(x, pw):
    flat = tuple((v for pair in reversed(pw) for v in pair))
    return torch.nn.functional.pad(x, flat)
kernel_name = 'adaLN_cond__gqa_block_cached__geglu_ffn__decode'

def setup_inputs():

    _w = lambda a: (lambda t: t.to(torch.bfloat16) if t.is_floating_point() else t)(torch.as_tensor(a))

    def _A_setup():
        B, Sq, D = (8, 1, 576)
        Hq, Hkv, Sk, Dh = (32, 16, 8192, 128)
        assert Hq % Hkv == 0, (Hq, Hkv)
        return {'x': _w((lambda *s: torch.randn(*s, dtype=torch.bfloat16) * 0.1)(B, Sq, D)), 'k_cache': _w((lambda *s: torch.randn(*s, dtype=torch.bfloat16) * 0.8)(B, Hkv, Sk, Dh)), 'v_cache': _w((lambda *s: torch.randn(*s, dtype=torch.bfloat16) * 0.8)(B, Hkv, Sk, Dh)), 'wq': _w((lambda *s: torch.randn(*s, dtype=torch.bfloat16) * 0.8)(D, Hq * Dh) * D ** (-0.5)), 'wo': _w((lambda *s: torch.randn(*s, dtype=torch.bfloat16) * 0.8)(Hq * Dh, D) * (Hq * Dh) ** (-0.5))}
    _A_in = _A_setup()

    def _B_setup():
        B, S, D, F = (8, 1, 576, 4608)
        return {'x': _w((lambda *s: torch.randn(*s, dtype=torch.bfloat16) * 0.1)(B, S, D)), 'w_gate': _w((lambda *s: torch.randn(*s, dtype=torch.bfloat16) * 0.1)(D, F)), 'w_up': _w((lambda *s: torch.randn(*s, dtype=torch.bfloat16) * 0.1)(D, F)), 'w_down': _w((lambda *s: torch.randn(*s, dtype=torch.bfloat16) * 0.1)(F, D))}
    _B_in = _B_setup()
    return {'A_x': _A_in['x'], 'A_k_cache': _A_in['k_cache'], 'A_v_cache': _A_in['v_cache'], 'A_wq': _A_in['wq'], 'A_wo': _A_in['wo'], 'B_x': _B_in['x'], 'B_w_gate': _B_in['w_gate'], 'B_w_up': _B_in['w_up'], 'B_w_down': _B_in['w_down'], 'c': _w((lambda *s: torch.randn(*s, dtype=torch.bfloat16) * 0.4)(8, 576) * 8.0), 'w_mod': _w((lambda *s: torch.randn(*s, dtype=torch.bfloat16) * 0.4)(576, 6 * 576) * 576 ** (-0.5) * 8.0)}

def reference(A_x, A_k_cache, A_v_cache, A_wq, A_wo, B_x, B_w_gate, B_w_up, B_w_down, c, w_mod):

    def _A_ref(x, k_cache, v_cache, wq, wo):
        B, Sq, D = x.shape
        Hq, Dh = (32, 128)
        Hkv = k_cache.shape[1]
        rep = Hq // Hkv
        q = (lambda x, *d: x.permute(*d))((x @ wq).reshape(B, Sq, Hq, Dh), 0, 2, 1, 3)
        k = (lambda x, n, axis: torch.repeat_interleave(x, n, dim=axis))(k_cache, rep, axis=1)
        v = (lambda x, n, axis: torch.repeat_interleave(x, n, dim=axis))(v_cache, rep, axis=1)
        scores = torch.einsum('bhqd,bhkd->bhqk', q, k) * Dh ** (-0.5)
        p = _softmax(scores, axis=-1)
        o = torch.einsum('bhqk,bhkd->bhqd', p, v)
        return (lambda x, *d: x.permute(*d))(o, 0, 2, 1, 3).reshape(B, Sq, Hq * Dh) @ wo

    def _B_ref(x, w_gate, w_up, w_down):
        return _gelu(x @ w_gate) * (x @ w_up) @ w_down
    x = A_x
    mod = (_silu(c) @ w_mod).reshape(c.shape[0], 6, 1, -1)
    sa, ca, ga, sb, cb, gb = (mod[:, 0].clone(), mod[:, 1].clone(), mod[:, 2].clone(), mod[:, 3].clone(), mod[:, 4].clone(), mod[:, 5].clone())
    h = _layernorm(x, axis=-1) * (1 + ca) + sa
    x = x + ga * _A_ref(h, A_k_cache, A_v_cache, A_wq, A_wo)
    h = _layernorm(x, axis=-1) * (1 + cb) + sb
    x = x + gb * _B_ref(h, B_w_gate, B_w_up, B_w_down)
    return x
```

```python
import re

TRANS = ('v_exp_f32', 'v_log_f32', 'v_rcp_f32', 'v_rsq_f32', 'v_sqrt_f32', 'v_sin_f32', 'v_cos_f32')

def regs_of(tok):
    tok = tok.strip()
    for pre in ('-abs(', 'abs(', '-', '|'):
        if tok.startswith(pre):
            tok = tok[len(pre):]
    tok = tok.rstrip(')|')
    m = re.fullmatch(r'([vs])(\d+)', tok)
    if m:
        return [(m.group(1), int(m.group(2)))]
    m = re.fullmatch(r'([vs])\[(\d+):(\d+)\]', tok)
    if m:
        return [(m.group(1), i) for i in range(int(m.group(2)), int(m.group(3)) + 1)]
    if tok == 'vcc':
        return [('s', 106), ('s', 107)]
    return []

class Em:
    def __init__(self):
        self.lines = []
        self.hist = []

    def raw(self, s):
        self.lines.append(s)

    def label(self, name):
        self.lines.append(name + ':')
        self.hist = []

    def nop(self, n):
        while n > 0:
            k = min(n, 16)
            self.lines.append('    s_nop %d' % (k - 1))
            self.hist.append(('nop', [], k))
            n -= k

    def _need(self, op, reads, is_vmem, is_dpp):
        need = 0
        dist = 0
        for kind, wr, width in reversed(self.hist[-8:]):
            for r in wr:
                if r in reads:
                    req = 0
                    if kind == 'trans' and op.startswith('v_') and op not in TRANS:
                        req = max(req, 1)
                    if kind in ('valu', 'trans', 'dot') and r[0] == 'v':
                        if is_dpp: req = max(req, 2)
                        if op.startswith('v_readlane') or op.startswith('v_readfirstlane'): req = max(req, 1)
                        if op.startswith('v_permlane'): req = max(req, 2)
                    if kind == 'dot' and r[0] == 'v' and not op.startswith('v_dot2_f32_bf16'):
                        req = max(req, 3)
                    if kind in ('valu', 'trans', 'dot') and r[0] == 's':
                        if is_vmem: req = max(req, 5)
                        elif op.startswith('v_'): req = max(req, 2)
                        else: req = max(req, 2)
                    need = max(need, req - dist)
            dist += width
        return need

    def __call__(self, text):
        text = text.strip()
        op, _, rest = text.partition(' ')
        core = rest.split(' row_')[0].split(' offen')[0].split(' offset')[0].split(' op_sel')[0]
        opnds = [t for t in core.split(',')] if rest else []
        is_dpp = '_dpp' in op
        is_vmem = op.startswith('buffer_') or op.startswith('global_')
        allregs = [regs_of(t) for t in opnds]
        if op.startswith('v_') or op.startswith('s_'):
            if op.startswith(('s_cmp', 's_cbranch', 's_branch', 's_waitcnt', 's_barrier', 's_nop', 's_setprio', 's_endpgm')):
                dst = []
                srcs = sum(allregs, [])
            else:
                dst = allregs[0] if allregs else []
                srcs = sum(allregs[1:], [])
                if op.startswith(('v_fmac', 'v_dot2c')) or is_dpp or op.startswith('v_permlane'):
                    srcs = srcs + dst
        elif op.startswith('ds_read') or (is_vmem and 'load' in op):
            dst = allregs[0]
            srcs = sum(allregs[1:], [])
        else:
            dst = []
            srcs = sum(allregs, [])
        n = self._need(op, srcs, is_vmem, is_dpp)
        if op.startswith('v_dot2_f32_bf16'):
            ab = allregs[1] + allregs[2]
            dist = 0
            for kind, wr, width in reversed(self.hist[-8:]):
                if kind == 'dot' and any(r in ab for r in wr):
                    n = max(n, 3 - dist)
                dist += width
        if n > 0:
            self.nop(n)
        self.lines.append('    ' + text)
        if op.startswith('v_'):
            kind = 'trans' if op in TRANS else ('dot' if op.startswith('v_dot2') else 'valu')
        else:
            kind = 'other'
        self.hist.append((kind, dst, 1))

    def text(self):
        return '\n'.join(self.lines) + '\n'
```

```python
import sys
sys.path.insert(0, 'gen')
from asmlib import Em

NAME = 'adaLN_cond__gqa_block_cached__geglu_ffn__decode'
WS_MOD = 0x0
WS_Q   = 0x20000
WS_PO  = 0x40000
WS_PML = 0x140000
WS_WOP = 0x150000
WS_X1  = 0x180000
WS_GU  = 0x190000
WS_DP  = 0x1E0000
WS_BYTES = 0x40000000
RED = 18432
LOG2E = 1.4426950408889634

def fhex(x):
    import struct
    return '0x%08x' % struct.unpack('<I', struct.pack('<f', x))[0]

def srd(em, d, p, nbytes):
    em('s_mov_b32 s%d, s%d' % (d, p))
    em('s_and_b32 s%d, s%d, 0xffff' % (d + 1, p + 1))
    em('s_mov_b32 s%d, 0x%x' % (d + 2, nbytes))
    em('s_mov_b32 s%d, 0x20000' % (d + 3))

def wave_allsum(em, v, s0=40):
    for r in (8, 4, 2, 1):
        em('v_add_f32_dpp v%d, v%d, v%d row_ror:%d row_mask:0xf bank_mask:0xf' % (v, v, v, r))
    for i in range(4):
        em('v_readlane_b32 s%d, v%d, %d' % (s0 + i, v, 16 * i))
    em('v_mov_b32 v%d, s%d' % (v, s0))
    for i in range(1, 4):
        em('v_add_f32 v%d, s%d, v%d' % (v, s0 + i, v))

def kernel_begin(em, label, nwg):
    em.raw('.globl %s\n.p2align 8\n.type %s,@function' % (label, label))
    em.label(label)
    em('s_cmp_ge_u32 s2, %d' % nwg)
    em('s_cbranch_scc1 L_end_%s' % label)

def kernel_end(em, label):
    em.label('L_end_%s' % label)
    em('s_endpgm')

def gemv(em, label, nwg, wargs, wbytes, ldw, nsteps, decode, prologue, epilogue, auxa=None):
    kernel_begin(em, label, nwg)
    em('s_load_dwordx2 s[28:29], s[0:1], %d' % wargs[0])
    if len(wargs) > 1:
        em('s_load_dwordx2 s[34:35], s[0:1], %d' % wargs[1])
    em('s_load_dwordx2 s[36:37], s[0:1], 104')
    if auxa is not None:
        em('s_load_dwordx2 s[38:39], s[0:1], %d' % auxa[0])
    em('s_waitcnt lgkmcnt(0)')
    decode(em)
    if len(wargs) > 1:
        em('s_cmp_eq_u32 s45, 0')
        em('s_cselect_b32 s28, s28, s34')
        em('s_cselect_b32 s29, s29, s35')
    srd(em, 8, 28, wbytes)
    srd(em, 12, 36, WS_BYTES)
    if auxa is not None:
        srd(em, 16, 38, auxa[1])
    em('v_and_b32 v1, 63, v0')
    em('v_lshrrev_b32 v2, 6, v0')
    em('v_lshrrev_b32 v3, 3, v1')
    em('v_and_b32 v4, 7, v1')
    em('v_lshl_add_u32 v5, v2, 3, v3')
    em('s_mov_b32 s33, %d' % ldw)
    em('v_mul_lo_u32 v6, v5, s33')
    em('v_lshl_add_u32 v6, v4, 4, v6')
    em('v_lshlrev_b32 v7, 5, v5')
    em('s_lshl_b32 s32, s30, 7')
    em('s_mul_i32 s34, s31, %d' % (nsteps * 32 * ldw))
    em('s_add_u32 s32, s32, s34')
    for s in range(nsteps):
        em('buffer_load_dwordx4 v[%d:%d], v6, s[8:11], s32 offen' % (128 + 4 * s, 131 + 4 * s))
        if s != nsteps - 1:
            em('s_add_u32 s32, s32, %d' % (32 * ldw))
    prologue(em)
    em('s_waitcnt vmcnt(0) lgkmcnt(0)')
    em('s_barrier')
    for i in range(64):
        em('v_mov_b32 v%d, 0' % (64 + i))
    for s in range(nsteps):
        em('ds_read_b128 v[200:203], v7 offset:%d' % (s * 1024))
        em('ds_read_b128 v[204:207], v7 offset:%d' % (s * 1024 + 16))
        for d in range(4):
            em('v_lshlrev_b32 v%d, 16, v%d' % (208 + 2 * d, 128 + 4 * s + d))
            em('v_and_b32 v%d, 0xffff0000, v%d' % (209 + 2 * d, 128 + 4 * s + d))
        em('s_waitcnt lgkmcnt(0)')
        for b in range(8):
            for j in range(8):
                em('v_fmac_f32 v%d, v%d, v%d' % (64 + b * 8 + j, 200 + b, 208 + j))
    em('v_lshlrev_b32 v8, 11, v5')
    em('v_lshl_add_u32 v8, v4, 5, v8')
    em('v_add_u32 v8, %d, v8' % RED)
    for b in range(8):
        em('ds_write_b128 v8, v[%d:%d] offset:%d' % (64 + b * 8, 67 + b * 8, b * 256))
        em('ds_write_b128 v8, v[%d:%d] offset:%d' % (68 + b * 8, 71 + b * 8, b * 256 + 16))
    em('s_waitcnt lgkmcnt(0)')
    em('s_barrier')
    em('v_lshrrev_b32 v9, 5, v0')
    em('v_and_b32 v10, 31, v0')
    em('v_lshlrev_b32 v11, 8, v9')
    em('v_lshl_add_u32 v11, v10, 3, v11')
    em('v_add_u32 v11, %d, v11' % RED)
    for r in range(32):
        em('ds_read_b64 v[%d:%d], v11 offset:%d' % (64 + 2 * r, 65 + 2 * r, r * 2048))
    em('s_waitcnt lgkmcnt(0)')
    for r in range(1, 32):
        em('v_add_f32 v64, v64, v%d' % (64 + 2 * r))
        em('v_add_f32 v65, v65, v%d' % (65 + 2 * r))
    epilogue(em)
    em('s_waitcnt vmcnt(0)')
    kernel_end(em, label)

def dec_plain(em):
    em('s_mov_b32 s30, s2'); em('s_mov_b32 s31, 0'); em('s_mov_b32 s45, 0')

def dec_div9(em):
    em('s_mov_b32 s40, 477218589')
    em('s_mul_hi_u32 s31, s2, s40')
    em('s_mul_i32 s40, s31, 9')
    em('s_sub_u32 s30, s2, s40')
    em('s_mov_b32 s45, 0')

def dec_gu(em):
    em('s_and_b32 s45, s2, 1'); em('s_lshr_b32 s30, s2, 1'); em('s_mov_b32 s31, 0')

def epi_f32(base_expr, rowbytes):
    def f(em):
        base_expr(em)
        em('s_mov_b32 s41, %d' % rowbytes)
        em('v_mul_lo_u32 v12, v9, s41')
        em('v_lshl_add_u32 v12, v10, 3, v12')
        em('buffer_store_dwordx2 v[64:65], v12, s[12:15], s40 offen')
    return f

def pro_A(em):
    em('v_lshlrev_b32 v216, 1, v0')
    for b in range(8):
        em('s_mov_b32 s48, %d' % (b * 1152))
        for i in range(3):
            em('buffer_load_ushort v%d, v216, s[16:19], s48 offen offset:%d' % (8 + b * 3 + i, i * 512))
    em('s_mov_b32 s40, %s' % fhex(-LOG2E))
    em('v_lshlrev_b32 v217, 5, v0')
    em('s_waitcnt vmcnt(0)')
    for b in range(8):
        for i in range(3):
            r = 8 + b * 3 + i
            em('v_lshlrev_b32 v%d, 16, v%d' % (r, r))
            em('v_mul_f32 v218, s40, v%d' % r)
            em('v_exp_f32 v218, v218')
            em('v_add_f32 v218, 1.0, v218')
            em('v_rcp_f32 v218, v218')
            em('v_mul_f32 v%d, v%d, v218' % (r, r))
    for b in range(8):
        for i in range(2):
            em('ds_write_b32 v217, v%d offset:%d' % (8 + b * 3 + i, i * 8192 + b * 4))
    em('v_cmp_gt_u32 vcc, 64, v0')
    em('s_and_saveexec_b64 s[42:43], vcc')
    for b in range(8):
        em('ds_write_b32 v217, v%d offset:%d' % (8 + b * 3 + 2, 2 * 8192 + b * 4))
    em('s_mov_b64 exec, s[42:43]')

def base_A(em):
    em('s_lshl_b32 s40, s30, 8'); em('s_add_u32 s40, s40, %d' % WS_MOD)

def ln9(em, xr):
    em('v_add_f32 v216, v%d, v%d' % (xr, xr + 1))
    for i in range(2, 9):
        em('v_add_f32 v216, v216, v%d' % (xr + i))
    wave_allsum(em, 216)
    em('v_mul_f32 v216, %s, v216' % fhex(1.0 / 576))
    for i in range(9):
        em('v_sub_f32 v%d, v%d, v216' % (xr + i, xr + i))
    em('v_mul_f32 v217, v%d, v%d' % (xr, xr))
    for i in range(1, 9):
        em('v_fmac_f32 v217, v%d, v%d' % (xr + i, xr + i))
    wave_allsum(em, 217)
    em('v_mov_b32 v218, %s' % fhex(1e-5))
    em('v_fmac_f32 v218, %s, v217' % fhex(1.0 / 576))
    em('v_rsq_f32 v218, v218')
    for i in range(9):
        em('v_mul_f32 v%d, v%d, v218' % (xr + i, xr + i))

def pro_B(em):
    em('v_mul_u32_u24 v216, 2304, v2')
    em('v_lshl_add_u32 v216, v1, 1, v216')
    em('s_mov_b32 s40, 27648')
    em('v_mul_lo_u32 v220, v2, s40')
    em('v_lshl_add_u32 v220, v1, 2, v220')
    em('v_add_u32 v221, 2304, v220')
    em('v_add_u32 v222, 13824, v220')
    em('v_add_u32 v223, 16128, v220')
    for bb in range(2):
        for i in range(9):
            em('buffer_load_ushort v%d, v216, s[16:19], 0 offen offset:%d' % (8 + bb * 9 + i, bb * 1152 + i * 128))
            em('buffer_load_dword v%d, v%d, s[12:15], 0 offen offset:%d' % (26 + bb * 9 + i, 220 + 2 * bb, i * 256))
            em('buffer_load_dword v%d, v%d, s[12:15], 0 offen offset:%d' % (44 + bb * 9 + i, 221 + 2 * bb, i * 256))
    em('v_lshlrev_b32 v224, 5, v1')
    em('v_lshl_add_u32 v224, v2, 3, v224')
    em('s_waitcnt vmcnt(0)')
    for bb in range(2):
        xr = 8 + bb * 9
        for i in range(9):
            em('v_lshlrev_b32 v%d, 16, v%d' % (xr + i, xr + i))
        ln9(em, xr)
        for i in range(9):
            em('v_add_f32 v219, 1.0, v%d' % (44 + bb * 9 + i))
            em('v_fma_f32 v%d, v%d, v219, v%d' % (xr + i, xr + i, 26 + bb * 9 + i))
            em('ds_write_b32 v224, v%d offset:%d' % (xr + i, i * 2048 + bb * 4))

def epi_B(em):
    em('s_lshl_b32 s40, s30, 7'); em('s_add_u32 s40, s40, %d' % WS_Q)
    em('v_lshlrev_b32 v12, 13, v9')
    em('v_lshl_add_u32 v12, v10, 2, v12')
    em('v_cvt_pk_bf16_f32 v64, v64, v65')
    em('buffer_store_dword v64, v12, s[12:15], s40 offen')

def pro_D(em):
    em('v_lshrrev_b32 v216, 5, v0')
    em('v_bfe_u32 v217, v0, 3, 2')
    em('v_and_b32 v218, 7, v0')
    em('s_lshl_b32 s40, s31, 2')
    em('v_add_u32 v219, s40, v217')
    em('v_lshrrev_b32 v220, 1, v219')
    em('v_and_b32 v221, 1, v219')
    em('v_lshl_add_u32 v220, v216, 4, v220')
    em('v_lshlrev_b32 v222, 13, v220')
    em('v_lshl_add_u32 v222, v221, 9, v222')
    em('v_lshl_add_u32 v222, v218, 6, v222')
    em('v_add_u32 v222, %d, v222' % WS_PO)
    em('v_add_u32 v223, 4096, v222')
    em('v_lshlrev_b32 v215, 7, v220')
    em('v_lshl_add_u32 v215, v221, 3, v215')
    em('v_add_u32 v215, %d, v215' % WS_PML)
    for s in range(8):
        base = (64 + 16 * s) if s < 4 else (192 + 16 * (s - 4))
        for j in range(4):
            em('buffer_load_dwordx4 v[%d:%d], v%d, s[12:15], 0 offen offset:%d' % (base + 4 * j, base + 4 * j + 3, 222 if s < 4 else 223, (s & 3) * 1024 + j * 16))
        em('buffer_load_dwordx2 v[%d:%d], v215, s[12:15], 0 offen offset:%d' % (8 + 2 * s, 9 + 2 * s, s * 16))
    em('v_lshlrev_b32 v24, 12, v217')
    em('v_lshl_add_u32 v24, v218, 9, v24')
    em('v_lshl_add_u32 v24, v216, 2, v24')
    em('s_waitcnt vmcnt(0)')
    em('v_max3_f32 v25, v8, v10, v12')
    em('v_max3_f32 v25, v25, v14, v16')
    em('v_max3_f32 v25, v25, v18, v20')
    em('v_max_f32 v25, v25, v22')
    em('v_mov_b32 v26, 0')
    for s in range(8):
        em('v_sub_f32 v%d, v%d, v25' % (8 + 2 * s, 8 + 2 * s))
        em('v_exp_f32 v%d, v%d' % (8 + 2 * s, 8 + 2 * s))
        em('v_fmac_f32 v26, v%d, v%d' % (8 + 2 * s, 9 + 2 * s))
    em('v_rcp_f32 v26, v26')
    for j in range(16):
        em('v_mul_f32 v27, v8, v%d' % (64 + j))
        for s in range(1, 8):
            base = (64 + 16 * s) if s < 4 else (192 + 16 * (s - 4))
            em('v_fmac_f32 v27, v%d, v%d' % (8 + 2 * s, base + j))
        em('v_mul_f32 v%d, v27, v26' % (28 + j))
        em('ds_write_b32 v24, v%d offset:%d' % (28 + j, j * 32))

def base_D(em):
    em('s_mul_i32 s40, s31, 18432'); em('s_lshl_b32 s41, s30, 8'); em('s_add_u32 s40, s40, s41')
    em('s_add_u32 s40, s40, %d' % WS_WOP)

def pro_E(em):
    em('v_mul_u32_u24 v226, 2304, v2')
    em('v_lshl_add_u32 v226, v1, 1, v226')
    em('s_mov_b32 s40, 27648')
    em('v_mul_lo_u32 v220, v2, s40')
    em('v_lshl_add_u32 v220, v1, 2, v220')
    em('v_mul_u32_u24 v221, 4608, v2')
    em('v_lshl_add_u32 v221, v1, 2, v221')
    em('v_add_u32 v221, %d, v221' % (WS_WOP - 2304))
    em('v_lshlrev_b32 v224, 5, v1')
    em('v_lshl_add_u32 v224, v2, 3, v224')
    em('s_mov_b32 s56, -2304')
    for hg in range(8):
        em('s_mov_b32 s%d, %d' % (48 + hg, hg * 18432))
    for bb in range(2):
        em('v_add_u32 v221, 2304, v221')
        em('v_add_u32 v222, %d, v220' % (bb * 13824 + 4608))
        em('v_add_u32 v223, %d, v220' % (bb * 13824 + 9216))
        em('v_add_u32 v227, %d, v220' % (bb * 13824 + 6912))
        for hg in range(8):
            base = 64 + 9 * hg if hg < 4 else 216 + 9 * (hg - 4) + 9
            base = 64 + 9 * hg if hg < 4 else 100 + 9 * (hg - 4) - 0
        for hg in range(8):
            base = (64 + 9 * hg) if hg < 4 else (8 + 9 * (hg - 4))
            for i in range(9):
                em('buffer_load_dword v%d, v221, s[12:15], s%d offen offset:%d' % (base + i, 48 + hg, i * 256))
        for i in range(9):
            em('buffer_load_ushort v%d, v226, s[16:19], 0 offen offset:%d' % (44 + i, bb * 1152 + i * 128))
            em('buffer_load_dword v%d, v222, s[12:15], 0 offen offset:%d' % (53 + i, i * 256))
            em('buffer_load_dword v%d, v223, s[12:15], 0 offen offset:%d' % (100 + i, i * 256))
            em('buffer_load_dword v%d, v227, s[12:15], 0 offen offset:%d' % (109 + i, i * 256))
        em('s_waitcnt vmcnt(0)')
        for i in range(9):
            for hg in range(1, 8):
                base = (64 + 9 * hg) if hg < 4 else (8 + 9 * (hg - 4))
                em('v_add_f32 v%d, v%d, v%d' % (64 + i, 64 + i, base + i))
            em('v_lshlrev_b32 v%d, 16, v%d' % (44 + i, 44 + i))
            em('v_fma_f32 v%d, v%d, v%d, v%d' % (64 + i, 64 + i, 53 + i, 44 + i))
        em('s_cmp_lg_u32 s2, 0')
        em('s_cbranch_scc1 L_skipx1_%d' % bb)
        em('v_add_u32 v225, %d, v221' % (WS_X1 - WS_WOP))
        for i in range(9):
            em('buffer_store_dword v%d, v225, s[12:15], 0 offen offset:%d' % (64 + i, i * 256))
        em.label('L_skipx1_%d' % bb)
        ln9(em, 64)
        for i in range(9):
            em('v_add_f32 v219, 1.0, v%d' % (100 + i))
            em('v_fma_f32 v%d, v%d, v219, v%d' % (64 + i, 64 + i, 109 + i))
            em('ds_write_b32 v224, v%d offset:%d' % (64 + i, i * 2048 + bb * 4))
        em('s_waitcnt vmcnt(0)')

def base_E(em):
    em('s_mul_i32 s40, s45, 147456'); em('s_lshl_b32 s41, s30, 8'); em('s_add_u32 s40, s40, s41')
    em('s_add_u32 s40, s40, %d' % WS_GU)

def pro_F(em):
    em('s_mul_i32 s40, s31, 2304')
    em('s_add_u32 s40, s40, %d' % WS_GU)
    em('v_lshlrev_b32 v216, 2, v0')
    em('v_add_u32 v216, s40, v216')
    em('v_add_u32 v217, 147456, v216')
    for b in range(8):
        em('s_mov_b32 s%d, %d' % (48 + b, b * 18432))
    for b in range(8):
        for i in range(3):
            em('buffer_load_dword v%d, v216, s[12:15], s%d offen offset:%d' % (8 + b * 3 + i, 48 + b, i * 1024))
            em('buffer_load_dword v%d, v217, s[12:15], s%d offen offset:%d' % (32 + b * 3 + i, 48 + b, i * 1024))
    em('s_mov_b32 s40, %s' % fhex(0.044715))
    em('s_mov_b32 s41, %s' % fhex(-2.0 * 0.7978845608028654 * LOG2E))
    em('v_lshlrev_b32 v218, 5, v0')
    em('s_waitcnt vmcnt(0)')
    for b in range(8):
        for i in range(3):
            r = 8 + b * 3 + i
            em('v_mul_f32 v219, v%d, v%d' % (r, r))
            em('v_mul_f32 v219, s40, v219')
            em('v_fma_f32 v219, v219, v%d, v%d' % (r, r))
            em('v_mul_f32 v219, s41, v219')
            em('v_exp_f32 v219, v219')
            em('v_add_f32 v219, 1.0, v219')
            em('v_rcp_f32 v219, v219')
            em('v_mul_f32 v%d, v%d, v219' % (r, r))
            em('v_mul_f32 v%d, v%d, v%d' % (r, r, 32 + b * 3 + i))
    for b in range(8):
        for i in range(2):
            em('ds_write_b32 v218, v%d offset:%d' % (8 + b * 3 + i, i * 8192 + b * 4))
    em('v_cmp_gt_u32 vcc, 64, v0')
    em('s_and_saveexec_b64 s[42:43], vcc')
    for b in range(8):
        em('ds_write_b32 v218, v%d offset:%d' % (8 + b * 3 + 2, 2 * 8192 + b * 4))
    em('s_mov_b64 exec, s[42:43]')

def base_F(em):
    em('s_mul_i32 s40, s31, 18432'); em('s_lshl_b32 s41, s30, 8'); em('s_add_u32 s40, s40, s41')
    em('s_add_u32 s40, s40, %d' % WS_DP)

def kernel_G(em, label):
    kernel_begin(em, label, 18)
    em('s_load_dwordx2 s[36:37], s[0:1], 104')
    em('s_load_dwordx2 s[38:39], s[0:1], 88')
    em('s_waitcnt lgkmcnt(0)')
    srd(em, 12, 36, WS_BYTES)
    srd(em, 16, 38, 9216)
    em('s_lshl_b32 s40, s2, 8')
    em('v_add_u32 v1, s40, v0')
    em('v_lshlrev_b32 v2, 2, v1')
    for ks in range(8):
        em('s_mov_b32 s%d, %d' % (48 + ks, WS_DP + ks * 18432))
        em('buffer_load_dword v%d, v2, s[12:15], s%d offen' % (8 + ks, 48 + ks))
    em('s_mov_b32 s41, %d' % WS_X1)
    em('buffer_load_dword v16, v2, s[12:15], s41 offen')
    em('s_mov_b32 s42, 7456541')
    em('v_mul_hi_u32 v3, v1, s42')
    em('v_mul_u32_u24 v3, 2880, v3')
    em('v_add_u32 v3, v3, v1')
    em('v_add_u32 v3, 2880, v3')
    em('v_lshlrev_b32 v3, 2, v3')
    em('buffer_load_dword v17, v3, s[12:15], 0 offen offset:%d' % (0))
    em('s_waitcnt vmcnt(0)')
    for ks in range(1, 8):
        em('v_add_f32 v8, v8, v%d' % (8 + ks))
    em('v_fma_f32 v8, v8, v17, v16')
    em('v_cvt_pk_bf16_f32 v8, v8, v8')
    em('v_lshlrev_b32 v2, 1, v1')
    em('buffer_store_short v8, v2, s[16:19], 0 offen')
    em('s_waitcnt vmcnt(0)')
    kernel_end(em, label)

def att_compute(em, B):
    K0, K1, V0, V1 = B, B + 4, B + 8, B + 12
    for i in range(4):
        for t, (k, q) in enumerate(((K0, 16), (K0, 20), (K1, 16), (K1, 20))):
            em('v_dot2_f32_bf16 v%d, v%d, v%d, %s' % (48 + t, k + i, q + i, '0' if i == 0 else 'v%d' % (48 + t)))
    for r in (8, 4, 2, 1):
        for t in range(4):
            em('v_add_f32_dpp v%d, v%d, v%d row_ror:%d row_mask:0xf bank_mask:0xf' % (48 + t, 48 + t, 48 + t, r))
    for t in range(4):
        em('v_mul_f32 v%d, s40, v%d' % (48 + t, 48 + t))
    for h in range(2):
        xa, xb, m, l, O = 48 + h, 50 + h, 24 + h, 26 + h, 32 + 8 * h
        em('v_max3_f32 v52, v%d, v%d, v%d' % (m, xa, xb))
        em('v_sub_f32 v53, v%d, v52' % m)
        em('v_sub_f32 v54, v%d, v52' % xa)
        em('v_sub_f32 v55, v%d, v52' % xb)
        em('v_exp_f32 v53, v53')
        em('v_exp_f32 v54, v54')
        em('v_exp_f32 v55, v55')
        em('v_mov_b32 v%d, v52' % m)
        em('v_fma_f32 v%d, v%d, v53, v54' % (l, l))
        em('v_add_f32 v%d, v%d, v55' % (l, l))
        em('v_cvt_pk_bf16_f32 v%d, v54, v55' % (56 + h))
        for j in range(8):
            em('v_mul_f32 v%d, v%d, v53' % (O + j, O + j))
    for i in range(4):
        em('v_perm_b32 v58, v%d, v%d, s41' % (V1 + i, V0 + i))
        em('v_perm_b32 v59, v%d, v%d, s42' % (V1 + i, V0 + i))
        for h in range(2):
            O = 32 + 8 * h
            em('v_dot2_f32_bf16 v%d, v%d, v58, v%d' % (O + 2 * i, 56 + h, O + 2 * i))
            em('v_dot2_f32_bf16 v%d, v%d, v59, v%d' % (O + 2 * i + 1, 56 + h, O + 2 * i + 1))

def att_loads(em, B):
    em('buffer_load_dwordx4 v[%d:%d], v3, s[8:11], s32 offen' % (B, B + 3))
    em('buffer_load_dwordx4 v[%d:%d], v3, s[8:11], s32 offen offset:1024' % (B + 4, B + 7))
    em('buffer_load_dwordx4 v[%d:%d], v3, s[16:19], s32 offen' % (B + 8, B + 11))
    em('buffer_load_dwordx4 v[%d:%d], v3, s[16:19], s32 offen offset:1024' % (B + 12, B + 15))
    em('s_add_u32 s32, s32, 2048')

def kernel_C(em, label):
    kernel_begin(em, label, 1024)
    em('s_load_dwordx2 s[28:29], s[0:1], 8')
    em('s_load_dwordx2 s[34:35], s[0:1], 16')
    em('s_load_dwordx2 s[36:37], s[0:1], 104')
    em('s_waitcnt lgkmcnt(0)')
    srd(em, 8, 28, 0x10000000)
    srd(em, 16, 34, 0x10000000)
    srd(em, 12, 36, WS_BYTES)
    em('v_and_b32 v1, 63, v0')
    em('v_lshrrev_b32 v2, 6, v0')
    em('v_lshlrev_b32 v3, 4, v1')
    em('v_readfirstlane_b32 s33, v2')
    em('s_lshl_b32 s32, s2, 18')
    em('s_lshl_b32 s33, s33, 16')
    em('s_add_u32 s32, s32, s33')
    for st in range(4):
        att_loads(em, 64 + 16 * st)
    em('s_lshr_b32 s43, s2, 3')
    em('s_lshl_b32 s43, s43, 9')
    em('s_add_u32 s43, s43, %d' % WS_Q)
    em('v_and_b32 v4, 15, v1')
    em('v_lshlrev_b32 v4, 4, v4')
    em('buffer_load_dwordx4 v[16:19], v4, s[12:15], s43 offen')
    em('buffer_load_dwordx4 v[20:23], v4, s[12:15], s43 offen offset:256')
    em('s_mov_b32 s40, %s' % fhex(128 ** -0.5 * LOG2E))
    em('s_mov_b32 s41, 0x05040100')
    em('s_mov_b32 s42, 0x07060302')
    em('v_mov_b32 v24, %s' % fhex(-3e38))
    em('v_mov_b32 v25, %s' % fhex(-3e38))
    em('v_mov_b32 v26, 0')
    em('v_mov_b32 v27, 0')
    for j in range(16):
        em('v_mov_b32 v%d, 0' % (32 + j))
    em('s_waitcnt vmcnt(0)')
    em('s_mov_b32 s44, 0')
    em.label('L_att_loop')
    for st in range(4):
        em('s_waitcnt vmcnt(12)')
        att_compute(em, 64 + 16 * st)
        att_loads(em, 64 + 16 * st)
    em('s_add_u32 s44, s44, 1')
    em('s_cmp_lt_u32 s44, 7')
    em.nop(3)
    em('s_cbranch_scc1 L_att_loop')
    for st in range(4):
        em('s_waitcnt vmcnt(%d)' % (12 - 4 * st))
        att_compute(em, 64 + 16 * st)
    em('v_lshrrev_b32 v5, 4, v0')
    em('v_lshlrev_b32 v6, 9, v5')
    em('v_lshl_add_u32 v6, v4, 1, v6')
    for h in range(2):
        em('ds_write_b128 v6, v[%d:%d] offset:%d' % (32 + 8 * h, 35 + 8 * h, h * 8192))
        em('ds_write_b128 v6, v[%d:%d] offset:%d' % (36 + 8 * h, 39 + 8 * h, h * 8192 + 16))
    em('v_lshlrev_b32 v7, 3, v5')
    em('v_mov_b32 v28, v24'); em('v_mov_b32 v29, v26'); em('v_mov_b32 v30, v25'); em('v_mov_b32 v31, v27')
    em('ds_write_b64 v7, v[28:29] offset:16384')
    em('ds_write_b64 v7, v[30:31] offset:%d' % (16384 + 128))
    em('s_waitcnt lgkmcnt(0)')
    em('s_barrier')
    em('v_lshrrev_b32 v8, 7, v0')
    em('v_and_b32 v9, 127, v0')
    em('v_lshlrev_b32 v10, 7, v8')
    em('v_lshlrev_b32 v11, 13, v8')
    em('v_lshl_add_u32 v11, v9, 2, v11')
    for g in range(16):
        em('ds_read_b64 v[%d:%d], v10 offset:%d' % (64 + 2 * g, 65 + 2 * g, 16384 + g * 8))
        em('ds_read_b32 v%d, v11 offset:%d' % (96 + g, g * 512))
    em('s_waitcnt lgkmcnt(0)')
    em('v_max3_f32 v12, v64, v66, v68')
    for g in range(3, 16, 2):
        em('v_max3_f32 v12, v12, v%d, v%d' % (64 + 2 * g, 64 + 2 * min(g + 1, 15)))
    em('v_mov_b32 v13, 0'); em('v_mov_b32 v14, 0')
    for g in range(16):
        em('v_sub_f32 v15, v%d, v12' % (64 + 2 * g))
        em('v_exp_f32 v15, v15')
        em('v_fmac_f32 v13, v15, v%d' % (65 + 2 * g))
        em('v_fmac_f32 v14, v15, v%d' % (96 + g))
    em('s_lshl_b32 s43, s2, 10')
    em('s_add_u32 s43, s43, %d' % WS_PO)
    em('v_lshlrev_b32 v11, 9, v8')
    em('v_lshl_add_u32 v11, v9, 2, v11')
    em('buffer_store_dword v14, v11, s[12:15], s43 offen')
    em('s_lshl_b32 s43, s2, 4')
    em('s_add_u32 s43, s43, %d' % WS_PML)
    em('v_lshlrev_b32 v10, 3, v8')
    em('v_cmp_eq_u32 vcc, 0, v9')
    em('s_and_saveexec_b64 s[46:47], vcc')
    em('buffer_store_dwordx2 v[12:13], v10, s[12:15], s43 offen')
    em('s_mov_b64 exec, s[46:47]')
    em('s_waitcnt vmcnt(0)')
    kernel_end(em, label)

def desc(label, vgpr=256):
    return '''.amdhsa_kernel %s
  .amdhsa_next_free_vgpr %d
  .amdhsa_next_free_sgpr 102
  .amdhsa_accum_offset %d
  .amdhsa_group_segment_fixed_size 0
  .amdhsa_kernarg_size 112
  .amdhsa_user_sgpr_count 2
  .amdhsa_user_sgpr_kernarg_segment_ptr 1
  .amdhsa_system_sgpr_workgroup_id_x 1
.end_amdhsa_kernel
''' % (label, vgpr, vgpr)

def main():
    hdr = open('cdna_kernels/%s.s.ref' % NAME).read().split('; Override launch')[0]
    em = Em()
    G = 83968
    launches = [('ka_kernel', 54, G), ('kb_kernel', 64, G), ('kc_kernel', 1024, 16640), ('kd_kernel', 72, G),
                ('ke_kernel', 144, G), ('kf_kernel', 72, G), ('kg_kernel', 18, 0)]
    gemv(em, 'ka_kernel', 54, [80], 576 * 6912, 6912, 18, dec_plain, pro_A, epi_f32(base_A, 13824), auxa=(72, 9216))
    gemv(em, 'kb_kernel', 64, [24], 576 * 8192, 8192, 18, dec_plain, pro_B, epi_B, auxa=(0, 9216))
    kernel_C(em, 'kc_kernel')
    gemv(em, 'kd_kernel', 72, [32], 4096 * 1152, 1152, 16, dec_div9, pro_D, epi_f32(base_D, 2304))
    gemv(em, 'ke_kernel', 144, [48, 56], 576 * 9216, 9216, 18, dec_gu, pro_E, epi_f32(base_E, 18432), auxa=(0, 9216))
    gemv(em, 'kf_kernel', 72, [64], 4608 * 1152, 1152, 18, dec_div9, pro_F, epi_f32(base_F, 2304))
    kernel_G(em, 'kg_kernel')
    out = hdr
    for l, g, lds in launches:
        out += '; @launch kernel=%s grid=(%d,1,1) block=(256,1,1) lds=%d\n' % (l, g, lds)
    out += '.amdgcn_target "amdgcn-amd-amdhsa--gfx950"\n.text\n' + em.text()
    out += '.section .rodata,"a"\n.p2align 6\n'
    for l, g, lds in launches:
        out += desc(l, 128 if l == 'kc_kernel' else 256)
    open('cdna_kernels/%s.s' % NAME, 'w').write(out)

main()
```

```python
import sys
sys.path.insert(0, 'gen')
from asmlib import Em

NAME = 'adaLN_cond__gqa_block_cached__geglu_ffn__decode'
WS_MOD = 0x0
WS_Q   = 0x20000
WS_PO  = 0x40000
WS_PML = 0x140000
WS_WOP = 0x150000
WS_X1  = 0x180000
WS_GU  = 0x190000
WS_DP  = 0x1E0000
WS_BYTES = 0x40000000
RED = 18432
LOG2E = 1.4426950408889634

def fhex(x):
    import struct
    return '0x%08x' % struct.unpack('<I', struct.pack('<f', x))[0]

def srd(em, d, p, nbytes):
    em('s_mov_b32 s%d, s%d' % (d, p))
    em('s_and_b32 s%d, s%d, 0xffff' % (d + 1, p + 1))
    em('s_mov_b32 s%d, 0x%x' % (d + 2, nbytes))
    em('s_mov_b32 s%d, 0x20000' % (d + 3))

def wave_allsum(em, v, s0=40):
    for r in (8, 4, 2, 1):
        em('v_add_f32_dpp v%d, v%d, v%d row_ror:%d row_mask:0xf bank_mask:0xf' % (v, v, v, r))
    for i in range(4):
        em('v_readlane_b32 s%d, v%d, %d' % (s0 + i, v, 16 * i))
    em('v_mov_b32 v%d, s%d' % (v, s0))
    for i in range(1, 4):
        em('v_add_f32 v%d, s%d, v%d' % (v, s0 + i, v))

def kernel_begin(em, label, nwg):
    em.raw('.globl %s\n.p2align 8\n.type %s,@function' % (label, label))
    em.label(label)
    em('s_cmp_ge_u32 s2, %d' % nwg)
    em('s_cbranch_scc1 L_end_%s' % label)

def kernel_end(em, label):
    em.label('L_end_%s' % label)
    em('s_endpgm')

def gemv(em, label, nwg, wargs, wbytes, ldw, nsteps, decode, prologue, epilogue, auxa=None):
    kernel_begin(em, label, nwg)
    em('s_load_dwordx2 s[28:29], s[0:1], %d' % wargs[0])
    if len(wargs) > 1:
        em('s_load_dwordx2 s[34:35], s[0:1], %d' % wargs[1])
    em('s_load_dwordx2 s[36:37], s[0:1], 104')
    if auxa is not None:
        em('s_load_dwordx2 s[38:39], s[0:1], %d' % auxa[0])
    em('s_waitcnt lgkmcnt(0)')
    decode(em)
    if len(wargs) > 1:
        em('s_cmp_eq_u32 s45, 0')
        em('s_cselect_b32 s28, s28, s34')
        em('s_cselect_b32 s29, s29, s35')
    srd(em, 8, 28, wbytes)
    srd(em, 12, 36, WS_BYTES)
    if auxa is not None:
        srd(em, 16, 38, auxa[1])
    em('v_and_b32 v1, 63, v0')
    em('v_lshrrev_b32 v2, 6, v0')
    em('v_lshrrev_b32 v3, 3, v1')
    em('v_and_b32 v4, 7, v1')
    em('v_lshl_add_u32 v5, v2, 3, v3')
    em('s_mov_b32 s33, %d' % ldw)
    em('v_mul_lo_u32 v6, v5, s33')
    em('v_lshl_add_u32 v6, v4, 4, v6')
    em('v_lshlrev_b32 v7, 5, v5')
    em('s_lshl_b32 s32, s30, 7')
    em('s_mul_i32 s34, s31, %d' % (nsteps * 32 * ldw))
    em('s_add_u32 s32, s32, s34')
    for s in range(nsteps):
        em('buffer_load_dwordx4 v[%d:%d], v6, s[8:11], s32 offen' % (128 + 4 * s, 131 + 4 * s))
        if s != nsteps - 1:
            em('s_add_u32 s32, s32, %d' % (32 * ldw))
    prologue(em)
    em('s_waitcnt vmcnt(0) lgkmcnt(0)')
    em('s_barrier')
    for i in range(64):
        em('v_mov_b32 v%d, 0' % (64 + i))
    for s in range(nsteps):
        em('ds_read_b128 v[200:203], v7 offset:%d' % (s * 1024))
        em('ds_read_b128 v[204:207], v7 offset:%d' % (s * 1024 + 16))
        for d in range(4):
            em('v_lshlrev_b32 v%d, 16, v%d' % (208 + 2 * d, 128 + 4 * s + d))
            em('v_and_b32 v%d, 0xffff0000, v%d' % (209 + 2 * d, 128 + 4 * s + d))
        em('s_waitcnt lgkmcnt(0)')
        for b in range(8):
            for j in range(8):
                em('v_fmac_f32 v%d, v%d, v%d' % (64 + b * 8 + j, 200 + b, 208 + j))
    em('v_lshlrev_b32 v8, 11, v5')
    em('v_lshl_add_u32 v8, v4, 5, v8')
    em('v_add_u32 v8, %d, v8' % RED)
    for b in range(8):
        em('ds_write_b128 v8, v[%d:%d] offset:%d' % (64 + b * 8, 67 + b * 8, b * 256))
        em('ds_write_b128 v8, v[%d:%d] offset:%d' % (68 + b * 8, 71 + b * 8, b * 256 + 16))
    em('s_waitcnt lgkmcnt(0)')
    em('s_barrier')
    em('v_lshrrev_b32 v9, 5, v0')
    em('v_and_b32 v10, 31, v0')
    em('v_lshlrev_b32 v11, 8, v9')
    em('v_lshl_add_u32 v11, v10, 3, v11')
    em('v_add_u32 v11, %d, v11' % RED)
    for r in range(32):
        em('ds_read_b64 v[%d:%d], v11 offset:%d' % (64 + 2 * r, 65 + 2 * r, r * 2048))
    em('s_waitcnt lgkmcnt(0)')
    for r in range(1, 32):
        em('v_add_f32 v64, v64, v%d' % (64 + 2 * r))
        em('v_add_f32 v65, v65, v%d' % (65 + 2 * r))
    epilogue(em)
    em('s_waitcnt vmcnt(0)')
    kernel_end(em, label)

def dec_plain(em):
    em('s_mov_b32 s30, s2'); em('s_mov_b32 s31, 0'); em('s_mov_b32 s45, 0')

def dec_div9(em):
    em('s_mov_b32 s40, 477218589')
    em('s_mul_hi_u32 s31, s2, s40')
    em('s_mul_i32 s40, s31, 9')
    em('s_sub_u32 s30, s2, s40')
    em('s_mov_b32 s45, 0')

def dec_gu(em):
    em('s_and_b32 s45, s2, 1'); em('s_lshr_b32 s30, s2, 1'); em('s_mov_b32 s31, 0')

def epi_f32(base_expr, rowbytes):
    def f(em):
        base_expr(em)
        em('s_mov_b32 s41, %d' % rowbytes)
        em('v_mul_lo_u32 v12, v9, s41')
        em('v_lshl_add_u32 v12, v10, 3, v12')
        em('buffer_store_dwordx2 v[64:65], v12, s[12:15], s40 offen')
    return f

def pro_A(em):
    em('v_lshlrev_b32 v216, 1, v0')
    for b in range(8):
        em('s_mov_b32 s48, %d' % (b * 1152))
        for i in range(3):
            em('buffer_load_ushort v%d, v216, s[16:19], s48 offen offset:%d' % (8 + b * 3 + i, i * 512))
    em('s_mov_b32 s40, %s' % fhex(-LOG2E))
    em('v_lshlrev_b32 v217, 5, v0')
    em('s_waitcnt vmcnt(0)')
    for b in range(8):
        for i in range(3):
            r = 8 + b * 3 + i
            em('v_lshlrev_b32 v%d, 16, v%d' % (r, r))
            em('v_mul_f32 v218, s40, v%d' % r)
            em('v_exp_f32 v218, v218')
            em('v_add_f32 v218, 1.0, v218')
            em('v_rcp_f32 v218, v218')
            em('v_mul_f32 v%d, v%d, v218' % (r, r))
    for b in range(8):
        for i in range(2):
            em('ds_write_b32 v217, v%d offset:%d' % (8 + b * 3 + i, i * 8192 + b * 4))
    em('v_cmp_gt_u32 vcc, 64, v0')
    em('s_and_saveexec_b64 s[42:43], vcc')
    for b in range(8):
        em('ds_write_b32 v217, v%d offset:%d' % (8 + b * 3 + 2, 2 * 8192 + b * 4))
    em('s_mov_b64 exec, s[42:43]')

def base_A(em):
    em('s_lshl_b32 s40, s30, 8'); em('s_add_u32 s40, s40, %d' % WS_MOD)

def ln9(em, xr):
    em('v_add_f32 v216, v%d, v%d' % (xr, xr + 1))
    for i in range(2, 9):
        em('v_add_f32 v216, v216, v%d' % (xr + i))
    wave_allsum(em, 216)
    em('v_mul_f32 v216, %s, v216' % fhex(1.0 / 576))
    for i in range(9):
        em('v_sub_f32 v%d, v%d, v216' % (xr + i, xr + i))
    em('v_mul_f32 v217, v%d, v%d' % (xr, xr))
    for i in range(1, 9):
        em('v_fmac_f32 v217, v%d, v%d' % (xr + i, xr + i))
    wave_allsum(em, 217)
    em('v_mov_b32 v218, %s' % fhex(1e-5))
    em('v_fmac_f32 v218, %s, v217' % fhex(1.0 / 576))
    em('v_rsq_f32 v218, v218')
    for i in range(9):
        em('v_mul_f32 v%d, v%d, v218' % (xr + i, xr + i))

def pro_B(em):
    em('v_mul_u32_u24 v216, 2304, v2')
    em('v_lshl_add_u32 v216, v1, 1, v216')
    em('s_mov_b32 s40, 27648')
    em('v_mul_lo_u32 v220, v2, s40')
    em('v_lshl_add_u32 v220, v1, 2, v220')
    em('v_add_u32 v221, 2304, v220')
    em('v_add_u32 v222, 13824, v220')
    em('v_add_u32 v223, 16128, v220')
    for bb in range(2):
        for i in range(9):
            em('buffer_load_ushort v%d, v216, s[16:19], 0 offen offset:%d' % (8 + bb * 9 + i, bb * 1152 + i * 128))
            em('buffer_load_dword v%d, v%d, s[12:15], 0 offen offset:%d' % (26 + bb * 9 + i, 220 + 2 * bb, i * 256))
            em('buffer_load_dword v%d, v%d, s[12:15], 0 offen offset:%d' % (44 + bb * 9 + i, 221 + 2 * bb, i * 256))
    em('v_lshlrev_b32 v224, 5, v1')
    em('v_lshl_add_u32 v224, v2, 3, v224')
    em('s_waitcnt vmcnt(0)')
    for bb in range(2):
        xr = 8 + bb * 9
        for i in range(9):
            em('v_lshlrev_b32 v%d, 16, v%d' % (xr + i, xr + i))
        ln9(em, xr)
        for i in range(9):
            em('v_add_f32 v219, 1.0, v%d' % (44 + bb * 9 + i))
            em('v_fma_f32 v%d, v%d, v219, v%d' % (xr + i, xr + i, 26 + bb * 9 + i))
            em('ds_write_b32 v224, v%d offset:%d' % (xr + i, i * 2048 + bb * 4))

def epi_B(em):
    em('s_lshl_b32 s40, s30, 7'); em('s_add_u32 s40, s40, %d' % WS_Q)
    em('v_lshlrev_b32 v12, 13, v9')
    em('v_lshl_add_u32 v12, v10, 2, v12')
    em('v_cvt_pk_bf16_f32 v64, v64, v65')
    em('buffer_store_dword v64, v12, s[12:15], s40 offen')

def pro_D(em):
    em('v_lshrrev_b32 v216, 5, v0')
    em('v_bfe_u32 v217, v0, 3, 2')
    em('v_and_b32 v218, 7, v0')
    em('s_lshl_b32 s40, s31, 2')
    em('v_add_u32 v219, s40, v217')
    em('v_lshrrev_b32 v220, 1, v219')
    em('v_and_b32 v221, 1, v219')
    em('v_lshl_add_u32 v220, v216, 4, v220')
    em('v_lshlrev_b32 v222, 13, v220')
    em('v_lshl_add_u32 v222, v221, 9, v222')
    em('v_lshl_add_u32 v222, v218, 6, v222')
    em('v_add_u32 v222, %d, v222' % WS_PO)
    em('v_add_u32 v223, 4096, v222')
    em('v_lshlrev_b32 v215, 7, v220')
    em('v_lshl_add_u32 v215, v221, 3, v215')
    em('v_add_u32 v215, %d, v215' % WS_PML)
    for s in range(8):
        base = (64 + 16 * s) if s < 4 else (192 + 16 * (s - 4))
        for j in range(4):
            em('buffer_load_dwordx4 v[%d:%d], v%d, s[12:15], 0 offen offset:%d' % (base + 4 * j, base + 4 * j + 3, 222 if s < 4 else 223, (s & 3) * 1024 + j * 16))
        em('buffer_load_dwordx2 v[%d:%d], v215, s[12:15], 0 offen offset:%d' % (8 + 2 * s, 9 + 2 * s, s * 16))
    em('v_lshlrev_b32 v24, 12, v217')
    em('v_lshl_add_u32 v24, v218, 9, v24')
    em('v_lshl_add_u32 v24, v216, 2, v24')
    em('s_waitcnt vmcnt(0)')
    em('v_max3_f32 v25, v8, v10, v12')
    em('v_max3_f32 v25, v25, v14, v16')
    em('v_max3_f32 v25, v25, v18, v20')
    em('v_max_f32 v25, v25, v22')
    em('v_mov_b32 v26, 0')
    for s in range(8):
        em('v_sub_f32 v%d, v%d, v25' % (8 + 2 * s, 8 + 2 * s))
        em('v_exp_f32 v%d, v%d' % (8 + 2 * s, 8 + 2 * s))
        em('v_fmac_f32 v26, v%d, v%d' % (8 + 2 * s, 9 + 2 * s))
    em('v_rcp_f32 v26, v26')
    for j in range(16):
        em('v_mul_f32 v27, v8, v%d' % (64 + j))
        for s in range(1, 8):
            base = (64 + 16 * s) if s < 4 else (192 + 16 * (s - 4))
            em('v_fmac_f32 v27, v%d, v%d' % (8 + 2 * s, base + j))
        em('v_mul_f32 v%d, v27, v26' % (28 + j))
        em('ds_write_b32 v24, v%d offset:%d' % (28 + j, j * 32))

def base_D(em):
    em('s_mul_i32 s40, s31, 18432'); em('s_lshl_b32 s41, s30, 8'); em('s_add_u32 s40, s40, s41')
    em('s_add_u32 s40, s40, %d' % WS_WOP)

def pro_E(em):
    em('v_mul_u32_u24 v226, 2304, v2')
    em('v_lshl_add_u32 v226, v1, 1, v226')
    em('s_mov_b32 s40, 27648')
    em('v_mul_lo_u32 v220, v2, s40')
    em('v_lshl_add_u32 v220, v1, 2, v220')
    em('v_mul_u32_u24 v221, 4608, v2')
    em('v_lshl_add_u32 v221, v1, 2, v221')
    em('v_add_u32 v221, %d, v221' % (WS_WOP - 2304))
    em('v_lshlrev_b32 v224, 5, v1')
    em('v_lshl_add_u32 v224, v2, 3, v224')
    em('s_mov_b32 s56, -2304')
    for hg in range(8):
        em('s_mov_b32 s%d, %d' % (48 + hg, hg * 18432))
    for bb in range(2):
        em('v_add_u32 v221, 2304, v221')
        em('v_add_u32 v222, %d, v220' % (bb * 13824 + 4608))
        em('v_add_u32 v223, %d, v220' % (bb * 13824 + 9216))
        em('v_add_u32 v227, %d, v220' % (bb * 13824 + 6912))
        for hg in range(8):
            base = 64 + 9 * hg if hg < 4 else 216 + 9 * (hg - 4) + 9
            base = 64 + 9 * hg if hg < 4 else 100 + 9 * (hg - 4) - 0
        for hg in range(8):
            base = (64 + 9 * hg) if hg < 4 else (8 + 9 * (hg - 4))
            for i in range(9):
                em('buffer_load_dword v%d, v221, s[12:15], s%d offen offset:%d' % (base + i, 48 + hg, i * 256))
        for i in range(9):
            em('buffer_load_ushort v%d, v226, s[16:19], 0 offen offset:%d' % (44 + i, bb * 1152 + i * 128))
            em('buffer_load_dword v%d, v222, s[12:15], 0 offen offset:%d' % (53 + i, i * 256))
            em('buffer_load_dword v%d, v223, s[12:15], 0 offen offset:%d' % (100 + i, i * 256))
            em('buffer_load_dword v%d, v227, s[12:15], 0 offen offset:%d' % (109 + i, i * 256))
        em('s_waitcnt vmcnt(0)')
        for i in range(9):
            for hg in range(1, 8):
                base = (64 + 9 * hg) if hg < 4 else (8 + 9 * (hg - 4))
                em('v_add_f32 v%d, v%d, v%d' % (64 + i, 64 + i, base + i))
            em('v_lshlrev_b32 v%d, 16, v%d' % (44 + i, 44 + i))
            em('v_fma_f32 v%d, v%d, v%d, v%d' % (64 + i, 64 + i, 53 + i, 44 + i))
        em('s_cmp_lg_u32 s2, 0')
        em('s_cbranch_scc1 L_skipx1_%d' % bb)
        em('v_add_u32 v225, %d, v221' % (WS_X1 - WS_WOP))
        for i in range(9):
            em('buffer_store_dword v%d, v225, s[12:15], 0 offen offset:%d' % (64 + i, i * 256))
        em.label('L_skipx1_%d' % bb)
        ln9(em, 64)
        for i in range(9):
            em('v_add_f32 v219, 1.0, v%d' % (100 + i))
            em('v_fma_f32 v%d, v%d, v219, v%d' % (64 + i, 64 + i, 109 + i))
            em('ds_write_b32 v224, v%d offset:%d' % (64 + i, i * 2048 + bb * 4))
        em('s_waitcnt vmcnt(0)')

def base_E(em):
    em('s_mul_i32 s40, s45, 147456'); em('s_lshl_b32 s41, s30, 8'); em('s_add_u32 s40, s40, s41')
    em('s_add_u32 s40, s40, %d' % WS_GU)

def pro_F(em):
    em('s_mul_i32 s40, s31, 2304')
    em('s_add_u32 s40, s40, %d' % WS_GU)
    em('v_lshlrev_b32 v216, 2, v0')
    em('v_add_u32 v216, s40, v216')
    em('v_add_u32 v217, 147456, v216')
    for b in range(8):
        em('s_mov_b32 s%d, %d' % (48 + b, b * 18432))
    for b in range(8):
        for i in range(3):
            em('buffer_load_dword v%d, v216, s[12:15], s%d offen offset:%d' % (8 + b * 3 + i, 48 + b, i * 1024))
            em('buffer_load_dword v%d, v217, s[12:15], s%d offen offset:%d' % (32 + b * 3 + i, 48 + b, i * 1024))
    em('s_mov_b32 s40, %s' % fhex(0.044715))
    em('s_mov_b32 s41, %s' % fhex(-2.0 * 0.7978845608028654 * LOG2E))
    em('v_lshlrev_b32 v218, 5, v0')
    em('s_waitcnt vmcnt(0)')
    for b in range(8):
        for i in range(3):
            r = 8 + b * 3 + i
            em('v_mul_f32 v219, v%d, v%d' % (r, r))
            em('v_mul_f32 v219, s40, v219')
            em('v_fma_f32 v219, v219, v%d, v%d' % (r, r))
            em('v_mul_f32 v219, s41, v219')
            em('v_exp_f32 v219, v219')
            em('v_add_f32 v219, 1.0, v219')
            em('v_rcp_f32 v219, v219')
            em('v_mul_f32 v%d, v%d, v219' % (r, r))
            em('v_mul_f32 v%d, v%d, v%d' % (r, r, 32 + b * 3 + i))
    for b in range(8):
        for i in range(2):
            em('ds_write_b32 v218, v%d offset:%d' % (8 + b * 3 + i, i * 8192 + b * 4))
    em('v_cmp_gt_u32 vcc, 64, v0')
    em('s_and_saveexec_b64 s[42:43], vcc')
    for b in range(8):
        em('ds_write_b32 v218, v%d offset:%d' % (8 + b * 3 + 2, 2 * 8192 + b * 4))
    em('s_mov_b64 exec, s[42:43]')

def base_F(em):
    em('s_mul_i32 s40, s31, 18432'); em('s_lshl_b32 s41, s30, 8'); em('s_add_u32 s40, s40, s41')
    em('s_add_u32 s40, s40, %d' % WS_DP)

def kernel_G(em, label):
    kernel_begin(em, label, 18)
    em('s_load_dwordx2 s[36:37], s[0:1], 104')
    em('s_load_dwordx2 s[38:39], s[0:1], 88')
    em('s_waitcnt lgkmcnt(0)')
    srd(em, 12, 36, WS_BYTES)
    srd(em, 16, 38, 9216)
    em('s_lshl_b32 s40, s2, 8')
    em('v_add_u32 v1, s40, v0')
    em('v_lshlrev_b32 v2, 2, v1')
    for ks in range(8):
        em('s_mov_b32 s%d, %d' % (48 + ks, WS_DP + ks * 18432))
        em('buffer_load_dword v%d, v2, s[12:15], s%d offen' % (8 + ks, 48 + ks))
    em('s_mov_b32 s41, %d' % WS_X1)
    em('buffer_load_dword v16, v2, s[12:15], s41 offen')
    em('s_mov_b32 s42, 7456541')
    em('v_mul_hi_u32 v3, v1, s42')
    em('v_mul_u32_u24 v3, 2880, v3')
    em('v_add_u32 v3, v3, v1')
    em('v_add_u32 v3, 2880, v3')
    em('v_lshlrev_b32 v3, 2, v3')
    em('buffer_load_dword v17, v3, s[12:15], 0 offen offset:%d' % (0))
    em('s_waitcnt vmcnt(0)')
    for ks in range(1, 8):
        em('v_add_f32 v8, v8, v%d' % (8 + ks))
    em('v_fma_f32 v8, v8, v17, v16')
    em('v_cvt_pk_bf16_f32 v8, v8, v8')
    em('v_lshlrev_b32 v2, 1, v1')
    em('buffer_store_short v8, v2, s[16:19], 0 offen')
    em('s_waitcnt vmcnt(0)')
    kernel_end(em, label)

def att_compute(em, B):
    K0, K1, V0, V1 = B, B + 4, B + 8, B + 12
    for i in range(4):
        for t, (k, q) in enumerate(((K0, 16), (K0, 20), (K1, 16), (K1, 20))):
            em('v_dot2_f32_bf16 v%d, v%d, v%d, %s' % (48 + t, k + i, q + i, '0' if i == 0 else 'v%d' % (48 + t)))
    for r in (8, 4, 2, 1):
        for t in range(4):
            em('v_add_f32_dpp v%d, v%d, v%d row_ror:%d row_mask:0xf bank_mask:0xf' % (48 + t, 48 + t, 48 + t, r))
    for t in range(4):
        em('v_mul_f32 v%d, s40, v%d' % (48 + t, 48 + t))
    for h in range(2):
        xa, xb, m, l, O = 48 + h, 50 + h, 24 + h, 26 + h, 32 + 8 * h
        em('v_max3_f32 v52, v%d, v%d, v%d' % (m, xa, xb))
        em('v_sub_f32 v53, v%d, v52' % m)
        em('v_sub_f32 v54, v%d, v52' % xa)
        em('v_sub_f32 v55, v%d, v52' % xb)
        em('v_exp_f32 v53, v53')
        em('v_exp_f32 v54, v54')
        em('v_exp_f32 v55, v55')
        em('v_mov_b32 v%d, v52' % m)
        em('v_fma_f32 v%d, v%d, v53, v54' % (l, l))
        em('v_add_f32 v%d, v%d, v55' % (l, l))
        em('v_cvt_pk_bf16_f32 v%d, v54, v55' % (56 + h))
        for j in range(8):
            em('v_mul_f32 v%d, v%d, v53' % (O + j, O + j))
    for i in range(4):
        em('v_perm_b32 v58, v%d, v%d, s41' % (V1 + i, V0 + i))
        em('v_perm_b32 v59, v%d, v%d, s42' % (V1 + i, V0 + i))
        for h in range(2):
            O = 32 + 8 * h
            em('v_dot2_f32_bf16 v%d, v%d, v58, v%d' % (O + 2 * i, 56 + h, O + 2 * i))
            em('v_dot2_f32_bf16 v%d, v%d, v59, v%d' % (O + 2 * i + 1, 56 + h, O + 2 * i + 1))

def att_loads(em, B):
    em('buffer_load_dwordx4 v[%d:%d], v3, s[8:11], s32 offen nt' % (B, B + 3))
    em('buffer_load_dwordx4 v[%d:%d], v3, s[8:11], s32 offen offset:1024 nt' % (B + 4, B + 7))
    em('buffer_load_dwordx4 v[%d:%d], v3, s[16:19], s32 offen nt' % (B + 8, B + 11))
    em('buffer_load_dwordx4 v[%d:%d], v3, s[16:19], s32 offen offset:1024 nt' % (B + 12, B + 15))
    em('s_add_u32 s32, s32, 2048')

def kernel_C(em, label):
    kernel_begin(em, label, 1024)
    em('s_load_dwordx2 s[28:29], s[0:1], 8')
    em('s_load_dwordx2 s[34:35], s[0:1], 16')
    em('s_load_dwordx2 s[36:37], s[0:1], 104')
    em('s_waitcnt lgkmcnt(0)')
    srd(em, 8, 28, 0x10000000)
    srd(em, 16, 34, 0x10000000)
    srd(em, 12, 36, WS_BYTES)
    em('v_and_b32 v1, 63, v0')
    em('v_lshrrev_b32 v2, 6, v0')
    em('v_lshlrev_b32 v3, 4, v1')
    em('v_readfirstlane_b32 s33, v2')
    em('s_lshl_b32 s32, s2, 18')
    em('s_lshl_b32 s33, s33, 16')
    em('s_add_u32 s32, s32, s33')
    for st in range(4):
        att_loads(em, 64 + 16 * st)
    em('s_lshr_b32 s43, s2, 3')
    em('s_lshl_b32 s43, s43, 9')
    em('s_add_u32 s43, s43, %d' % WS_Q)
    em('v_and_b32 v4, 15, v1')
    em('v_lshlrev_b32 v4, 4, v4')
    em('buffer_load_dwordx4 v[16:19], v4, s[12:15], s43 offen')
    em('buffer_load_dwordx4 v[20:23], v4, s[12:15], s43 offen offset:256')
    em('s_mov_b32 s40, %s' % fhex(128 ** -0.5 * LOG2E))
    em('s_mov_b32 s41, 0x05040100')
    em('s_mov_b32 s42, 0x07060302')
    em('v_mov_b32 v24, %s' % fhex(-3e38))
    em('v_mov_b32 v25, %s' % fhex(-3e38))
    em('v_mov_b32 v26, 0')
    em('v_mov_b32 v27, 0')
    for j in range(16):
        em('v_mov_b32 v%d, 0' % (32 + j))
    em('s_waitcnt vmcnt(0)')
    em('s_mov_b32 s44, 0')
    em.label('L_att_loop')
    for st in range(4):
        em('s_waitcnt vmcnt(12)')
        att_compute(em, 64 + 16 * st)
        att_loads(em, 64 + 16 * st)
    em('s_add_u32 s44, s44, 1')
    em('s_cmp_lt_u32 s44, 7')
    em.nop(3)
    em('s_cbranch_scc1 L_att_loop')
    for st in range(4):
        em('s_waitcnt vmcnt(%d)' % (12 - 4 * st))
        att_compute(em, 64 + 16 * st)
    em('v_lshrrev_b32 v5, 4, v0')
    em('v_lshlrev_b32 v6, 9, v5')
    em('v_lshl_add_u32 v6, v4, 1, v6')
    for h in range(2):
        em('ds_write_b128 v6, v[%d:%d] offset:%d' % (32 + 8 * h, 35 + 8 * h, h * 8192))
        em('ds_write_b128 v6, v[%d:%d] offset:%d' % (36 + 8 * h, 39 + 8 * h, h * 8192 + 16))
    em('v_lshlrev_b32 v7, 3, v5')
    em('v_mov_b32 v28, v24'); em('v_mov_b32 v29, v26'); em('v_mov_b32 v30, v25'); em('v_mov_b32 v31, v27')
    em('ds_write_b64 v7, v[28:29] offset:16384')
    em('ds_write_b64 v7, v[30:31] offset:%d' % (16384 + 128))
    em('s_waitcnt lgkmcnt(0)')
    em('s_barrier')
    em('v_lshrrev_b32 v8, 7, v0')
    em('v_and_b32 v9, 127, v0')
    em('v_lshlrev_b32 v10, 7, v8')
    em('v_lshlrev_b32 v11, 13, v8')
    em('v_lshl_add_u32 v11, v9, 2, v11')
    for g in range(16):
        em('ds_read_b64 v[%d:%d], v10 offset:%d' % (64 + 2 * g, 65 + 2 * g, 16384 + g * 8))
        em('ds_read_b32 v%d, v11 offset:%d' % (96 + g, g * 512))
    em('s_waitcnt lgkmcnt(0)')
    em('v_max3_f32 v12, v64, v66, v68')
    for g in range(3, 16, 2):
        em('v_max3_f32 v12, v12, v%d, v%d' % (64 + 2 * g, 64 + 2 * min(g + 1, 15)))
    em('v_mov_b32 v13, 0'); em('v_mov_b32 v14, 0')
    for g in range(16):
        em('v_sub_f32 v15, v%d, v12' % (64 + 2 * g))
        em('v_exp_f32 v15, v15')
        em('v_fmac_f32 v13, v15, v%d' % (65 + 2 * g))
        em('v_fmac_f32 v14, v15, v%d' % (96 + g))
    em('s_lshl_b32 s43, s2, 10')
    em('s_add_u32 s43, s43, %d' % WS_PO)
    em('v_lshlrev_b32 v11, 9, v8')
    em('v_lshl_add_u32 v11, v9, 2, v11')
    em('buffer_store_dword v14, v11, s[12:15], s43 offen')
    em('s_lshl_b32 s43, s2, 4')
    em('s_add_u32 s43, s43, %d' % WS_PML)
    em('v_lshlrev_b32 v10, 3, v8')
    em('v_cmp_eq_u32 vcc, 0, v9')
    em('s_and_saveexec_b64 s[46:47], vcc')
    em('buffer_store_dwordx2 v[12:13], v10, s[12:15], s43 offen')
    em('s_mov_b64 exec, s[46:47]')
    em('s_waitcnt vmcnt(0)')
    kernel_end(em, label)

def desc(label, vgpr=256):
    return '''.amdhsa_kernel %s
  .amdhsa_next_free_vgpr %d
  .amdhsa_next_free_sgpr 102
  .amdhsa_accum_offset %d
  .amdhsa_group_segment_fixed_size 0
  .amdhsa_kernarg_size 112
  .amdhsa_user_sgpr_count 2
  .amdhsa_user_sgpr_kernarg_segment_ptr 1
  .amdhsa_system_sgpr_workgroup_id_x 1
.end_amdhsa_kernel
''' % (label, vgpr, vgpr)

def main():
    hdr = open('cdna_kernels/%s.s.ref' % NAME).read().split('; Override launch')[0]
    em = Em()
    G = 83968
    launches = [('ka_kernel', 54, G), ('kb_kernel', 64, G), ('kc_kernel', 1024, 16640), ('kd_kernel', 72, G),
                ('ke_kernel', 144, G), ('kf_kernel', 72, G), ('kg_kernel', 18, 0)]
    gemv(em, 'ka_kernel', 54, [80], 576 * 6912, 6912, 18, dec_plain, pro_A, epi_f32(base_A, 13824), auxa=(72, 9216))
    gemv(em, 'kb_kernel', 64, [24], 576 * 8192, 8192, 18, dec_plain, pro_B, epi_B, auxa=(0, 9216))
    kernel_C(em, 'kc_kernel')
    gemv(em, 'kd_kernel', 72, [32], 4096 * 1152, 1152, 16, dec_div9, pro_D, epi_f32(base_D, 2304))
    gemv(em, 'ke_kernel', 144, [48, 56], 576 * 9216, 9216, 18, dec_gu, pro_E, epi_f32(base_E, 18432), auxa=(0, 9216))
    gemv(em, 'kf_kernel', 72, [64], 4608 * 1152, 1152, 18, dec_div9, pro_F, epi_f32(base_F, 2304))
    kernel_G(em, 'kg_kernel')
    out = hdr
    for l, g, lds in launches:
        out += '; @launch kernel=%s grid=(%d,1,1) block=(256,1,1) lds=%d\n' % (l, g, lds)
    out += '.amdgcn_target "amdgcn-amd-amdhsa--gfx950"\n.text\n' + em.text()
    out += '.section .rodata,"a"\n.p2align 6\n'
    for l, g, lds in launches:
        out += desc(l, 128 if l == 'kc_kernel' else 256)
    open('cdna_kernels/%s.s' % NAME, 'w').write(out)

main()
```
